```python
import torch

def _softmax(x, axis=-1):
    return torch.softmax(x, dim=axis)
def _gelu(x):
    return torch.nn.functional.gelu(x, approximate="tanh")
def _silu(x):
    return torch.nn.functional.silu(x)
def _sigmoid(x):
    return torch.sigmoid(x)
def _layernorm(x, axis=-1, eps=1e-5):
    m = x.mean(dim=axis, keepdim=True)
    v = x.var(dim=axis, keepdim=True, unbiased=False)
    return (x - m) / torch.sqrt(v + eps)
def _scatter_add(tgt, idx, src, axis=0):
    return tgt.clone().index_add_(axis, idx, src)
def _segment_sum(src, seg, n):
    out = torch.zeros((n,) + src.shape[1:], dtype=src.dtype)
    return out.index_add_(0, seg, src)
def _pad(x, pw):
    flat = tuple(v for pair in reversed(pw) for v in pair)
    return torch.nn.functional.pad(x, flat)

kernel_name = 'parallel_sum__linear_kernel_hedgehog__dense_activation_squared_relu__prompt'

def setup_inputs():

    _w = (lambda a: (lambda t: t.to(torch.bfloat16) if t.is_floating_point() else t)(torch.as_tensor(a)))
    def _A_setup():
        B, S, D, H = 1, 2048, 512, 32
        Dh = D // H
        return {
            "x": _w((lambda *s: torch.randn(*s, dtype=torch.bfloat16) * 0.05)(B, S, D)),
            "wqkv": _w((lambda *s: torch.randn(*s, dtype=torch.bfloat16) * 0.8)(D, 3 * D)),
            "w_phi": _w((lambda *s: torch.randn(*s, dtype=torch.bfloat16) * 0.8)(H, Dh, Dh) * (Dh ** -0.5)),
            "wo": _w((lambda *s: torch.randn(*s, dtype=torch.bfloat16) * 0.2)(D, D)),
        }
    _A_in = _A_setup()

    def _B_setup():
        B, S, D, F = 1, 2048, 512, 1376
        return {
            "x": _w((lambda *s: torch.randn(*s, dtype=torch.bfloat16) * 0.05)(B, S, D)),
            "w1": _w((lambda *s: torch.randn(*s, dtype=torch.bfloat16) * 0.05)(D, F)),
            "b1": _w((lambda *s: torch.randn(*s, dtype=torch.bfloat16) * 0.8)(F)),
            "w2": _w((lambda *s: torch.randn(*s, dtype=torch.bfloat16) * 0.05)(F, D)),
            "b2": _w((lambda *s: torch.randn(*s, dtype=torch.bfloat16) * 3.2)(D)),
        }
    _B_in = _B_setup()

    return {
        "A_x": _A_in["x"],
        "A_wqkv": _A_in["wqkv"],
        "A_w_phi": _A_in["w_phi"],
        "A_wo": _A_in["wo"],
        "B_x": _B_in["x"],
        "B_w1": _B_in["w1"],
        "B_b1": _B_in["b1"],
        "B_w2": _B_in["w2"],
        "B_b2": _B_in["b2"],
    }

def reference(A_x, A_wqkv, A_w_phi, A_wo, B_x, B_w1, B_b1, B_w2, B_b2):
    def _A_ref(x, wqkv, w_phi, wo):
        B, S, D = x.shape
        H = 32; Dh = D // H
        qkv = (lambda x, *d: x.permute(*d))((x @ wqkv).reshape(B, S, 3, H, Dh), 2, 0, 3, 1, 4)
        q, k, v = qkv[0], qkv[1], qkv[2]
        pq = torch.einsum("bhsd,hdf->bhsf", q, w_phi)
        pk = torch.einsum("bhsd,hdf->bhsf", k, w_phi)
        phi_q = torch.concatenate([_softmax(pq, axis=-1), _softmax(-pq, axis=-1)], axis=-1)
        phi_k = torch.concatenate([_softmax(pk, axis=-1), _softmax(-pk, axis=-1)], axis=-1)
        kv = torch.einsum("bhsf,bhsd->bhfd", phi_k, v)
        z  = torch.einsum("bhsf->bhf", phi_k)
        num = torch.einsum("bhqf,bhfd->bhqd", phi_q, kv)
        den = torch.einsum("bhqf,bhf->bhq", phi_q, z)[..., None] + 1e-6
        o = num / den
        return (lambda x, *d: x.permute(*d))(o, 0, 2, 1, 3).reshape(B, S, D) @ wo

    def _B_ref(x, w1, b1, w2, b2):
        h = torch.einsum("bsd,df->bsf", x, w1) + b1
        zero = torch.zeros_like(h)
        r = torch.where(h > zero, h, zero)
        h = r * r
        out = torch.einsum("bsf,fd->bsd", h, w2) + b2
        return out

    x = A_x
    xn = _layernorm(x, axis=-1)
    return x + _A_ref(xn, A_wqkv, A_w_phi, A_wo) + _B_ref(xn, B_w1, B_b1, B_w2, B_b2)
```

```python
import sys

KN = "parallel_sum__linear_kernel_hedgehog__dense_activation_squared_relu__prompt"

WS_FLAG = 0x0000
WS_KVF = 0x2000
WS_EPOCH = 0x4000
WS_KVP = 0x10000
WS_A = 0x100000
WS_TS = 0x1000000
WS_SIZE = 268435456

G = [n * 16384 for n in range(8)]
L_VT = 131072
L_KVX = 131072
L_XRES = 139264
L_BEXT = 151552
L_RSTD = 153600
L_AEXT = 154624
L_WPHI = 158720
LDS_BYTES = 160768 + 0
assert L_WPHI + 2048 <= LDS_BYTES <= 163840

LATE_FT = [4, 5, 10, 11, 16, 17, 22, 27, 32, 37, 42]
LOG2E = 0x3FB8AA3B
SPIN_MAX = 400000


class Asm:
    def __init__(self):
        self.L = []
        self.nlab = 0

    def __call__(self, s):
        for line in s.split("\n"):
            line = line.strip()
            if line:
                self.L.append("    " + line if not line.endswith(":") else line)

    def label(self, base):
        self.nlab += 1
        return f"L_{base}_{self.nlab}"

    def text(self):
        return "\n".join(self.L) + "\n"


def vr(a, n):
    return f"v[{a}:{a+n-1}]" if n > 1 else f"v{a}"


def ar(a, n):
    return f"a[{a}:{a+n-1}]" if n > 1 else f"a{a}"


def srd(e, d, p, nbytes):
    e(f"s_mov_b32 s{d}, s{p}\ns_mov_b32 s{d+1}, s{p+1}\ns_mov_b32 s{d+2}, {nbytes}\ns_mov_b32 s{d+3}, 0x20000")


class Gen:
    def __init__(self, opt):
        self.o = opt
        self.e = Asm()
        self.stamp_n = {"C": 0, "H": 0}
        self.stamp_names = {"C": [], "H": []}

    def stamp(self, role, name):
        if not self.o.get("stamps"):
            return
        n = self.stamp_n[role]
        assert n < 24, "too many stamps"
        self.e(f"s_memtime s[76:77]\ns_waitcnt lgkmcnt(0)\ns_mov_b32 s{78+n}, s76")
        self.stamp_n[role] = n + 1
        if len(self.stamp_names[role]) <= n:
            self.stamp_names[role].append(name)

    def dump_stamps(self, role):
        if not self.o.get("stamps"):
            return
        e = self.e
        n = self.stamp_n[role]
        e("s_memrealtime s[76:77]\ns_waitcnt lgkmcnt(0)")
        e("s_lshl_b32 s64, s2, 3\ns_add_u32 s64, s64, s26\ns_lshl_b32 s64, s64, 7")
        e(f"s_add_u32 s64, s64, {WS_TS}")
        e("s_mov_b64 exec, 1\nv_mov_b32 v1, 0")
        for k in range(n):
            e(f"v_mov_b32 v2, s{78+k}\nbuffer_store_dword v2, v1, s[52:55], s64 offen offset:{4*k}\ns_nop 1")
        e(f"v_mov_b32 v2, s76\nbuffer_store_dword v2, v1, s[52:55], s64 offen offset:{4*30}\ns_nop 1")
        e(f"v_mov_b32 v2, s3\nbuffer_store_dword v2, v1, s[52:55], s64 offen offset:{4*31}")
        e("s_mov_b64 exec, -1")

    def prologue(self):
        e = self.e
        e(f".globl {KN}_kernel\n.p2align 8\n.type {KN}_kernel,@function\n{KN}_kernel:")
        e("s_cmp_ge_u32 s2, 256\ns_cbranch_scc1 L_end")
        e("s_load_dwordx8 s[4:11], s[0:1], 0")
        e("s_load_dwordx8 s[12:19], s[0:1], 40")
        e("s_load_dwordx4 s[20:23], s[0:1], 72")
        e("s_load_dwordx2 s[24:25], s[0:1], 88")
        if self.o.get("stamps"):
            e("s_memrealtime s[74:75]")
        e("v_lshrrev_b32 v1, 6, v0\nv_and_b32 v0, 63, v0")
        e("s_and_b32 s64, s2, 7")
        e("v_readfirstlane_b32 s26, v1")
        e("s_lshr_b32 s65, s2, 3")
        e("s_lshr_b32 s66, s65, 3")
        e("s_and_b32 s32, s65, 7")
        e("s_lshr_b32 s67, s64, 1\ns_lshl_b32 s67, s67, 2\ns_add_u32 s27, s67, s66")
        e("s_lshr_b32 s28, s32, 2")
        e("s_and_b32 s67, s64, 1\ns_lshl_b32 s67, s67, 2\ns_and_b32 s68, s32, 3\ns_add_u32 s29, s67, s68")
        e("s_lshl_b32 s67, s66, 1\ns_add_u32 s67, s67, s32\ns_and_b32 s30, s67, 7")
        e("s_lshl_b32 s67, s64, 2\ns_add_u32 s31, s67, s66")
        e("s_and_b32 s33, s26, 3")
        e("s_cmp_ge_u32 s26, 4\ns_cbranch_scc1 L_H")

    def gen_H(self):
        e = self.e
        o = self.o
        ops = []

        def wait_for(tag):
            last = max(i for i, t in enumerate(ops) if t == tag)
            n = len(ops) - 1 - last
            e(f"s_waitcnt vmcnt({min(n, 63)})")

        e("L_H:")
        if o.get("hprio", 1):
            e(f"s_setprio {o.get('hprio', 1)}")
        e("v_lshrrev_b32 v10, 3, v0")
        e("v_and_b32 v11, 7, v0")
        e("v_lshrrev_b32 v12, 4, v0")
        e("v_xor_b32 v13, v11, v12")
        e("v_lshlrev_b32 v14, 10, v10")
        e("v_lshl_add_u32 v2, v13, 4, v14")
        e("v_xor_b32 v13, 4, v13")
        e("v_lshl_add_u32 v3, v13, 4, v14")
        e("v_and_b32 v12, 1, v12\nv_lshlrev_b32 v12, 2, v12\nv_xor_b32 v13, v11, v12")
        e("v_lshl_add_u32 v6, v13, 4, v14")
        e("v_lshlrev_b32 v7, 4, v0\nv_lshlrev_b32 v8, 2, v0")
        e("s_cmp_eq_u32 s28, 0")
        e("s_movk_i32 s68, 3072\ns_cselect_b32 s64, s68, 2752")
        e("s_min_u32 s68, s29, 3\ns_mul_i32 s69, s29, 5\ns_add_u32 s69, s69, s68")
        e("s_lshl_b32 s70, s69, 6")
        e("s_lshl_b32 s71, s29, 7")
        e("s_add_u32 s65, s71, 1024\ns_add_u32 s66, s71, 2048\ns_mov_b32 s67, s71")
        e("s_cmp_eq_u32 s28, 0")
        e("s_cselect_b32 s65, s65, s70\ns_add_u32 s70, s70, 128\ns_cmp_eq_u32 s28, 0\ns_cselect_b32 s66, s66, s70")
        e("s_add_u32 s70, s70, 128\ns_cmp_eq_u32 s28, 0\ns_cselect_b32 s67, s67, s70")
        e("v_mul_lo_u32 v14, v10, s64")
        e("v_lshl_add_u32 v4, v13, 4, v14")
        e("s_cmp_ge_u32 s29, 3\ns_cselect_b32 s68, s28, 0")
        e("s_lshl_b32 s68, s68, 30")
        e("v_lshrrev_b32 v12, 2, v13\nv_mul_lo_u32 v12, v12, s68\nv_add_u32 v5, v4, v12")
        e("s_lshl_b32 s35, s33, 10")
        e("s_lshl_b32 s68, s27, 17\ns_lshl_b32 s70, s33, 15\ns_add_u32 s72, s68, s70")
        e("s_lshl_b32 s70, s33, 4\ns_mul_i32 s73, s70, s64")
        e("s_waitcnt lgkmcnt(0)")
        if o.get("stamps"):
            e("s_mov_b32 s3, s74")
        srd(e, 36, 4, 2048 * 1024)
        e("s_cmp_eq_u32 s28, 0")
        e("s_cselect_b32 s40, s6, s12\ns_cselect_b32 s41, s7, s13")
        e(f"s_mov_b32 s68, {512*3072}\ns_cselect_b32 s42, s68, {512*2752}\ns_mov_b32 s43, 0x20000")

        def chunk_regs(t):
            e(f"s_add_u32 s68, s30, {t}\ns_and_b32 s68, s68, 7")
            e("s_lshl_b32 s74, s68, 7\ns_add_u32 s74, s74, s72")
            e("s_lshl_b32 s68, s68, 6\ns_mul_i32 s75, s68, s64\ns_add_u32 s75, s75, s73")

        def dma(v, s, soff, m0expr, tag, extra=""):
            if m0expr:
                e(m0expr + "\ns_nop 0")
            e(f"buffer_load_dwordx4 v{v}, s[{s}:{s+3}], {soff} offen {extra} lds")
            ops.append(tag)

        def issue_stage(t):
            chunk_regs(t)
            gx, gp = G[t % 3], G[3 + t % 3]
            for n in range(4):
                e(f"s_add_u32 s68, s74, {n*8192}")
                e(f"s_lshl_b32 s69, s35, 2")
                dma(2 + (n & 1), 36, "s68", f"s_add_u32 m0, s69, {gx + n*1024}", f"S{t}")
            for rg in range(2):
                for p in range(2):
                    e(f"s_lshl_b32 s69, s64, 3\ns_mul_i32 s69, s69, {rg}\ns_add_u32 s68, s75, s69\ns_add_u32 s68, s68, s{65+p}")
                    e("s_lshl_b32 s69, s35, 1")
                    dma(4, 40, "s68", f"s_add_u32 m0, s69, {gp + p*8192 + rg*1024}", f"S{t}")

        P2G = [G[6], G[7], G[2], G[5]]

        def issue_p2(gam):
            for cc in range(2):
                chunk_regs(2 * gam + cc)
                for rg in range(2):
                    e(f"s_lshl_b32 s69, s64, 3\ns_mul_i32 s69, s69, {rg}\ns_add_u32 s68, s75, s69\ns_add_u32 s68, s68, s67")
                    e("s_lshl_b32 s69, s35, 1")
                    dma(5, 40, "s68", f"s_add_u32 m0, s69, {P2G[gam] + cc*8192 + rg*1024}", f"P2_{gam}")

        issue_stage(0)
        srd(e, 52, 24, WS_SIZE)
        e(f"s_load_dword s34, s[24:25], {WS_EPOCH}")
        issue_stage(1)
        srd(e, 56, 8, 32 * 512)
        e("s_mov_b32 s60, s14\ns_mov_b32 s61, s15\ns_mul_i32 s62, s28, 2752\ns_mov_b32 s63, 0x20000")
        e("s_lshl_b32 s68, s29, 2\ns_add_u32 s68, s68, s33\ns_lshl_b32 s68, s68, 9")
        e("s_lshl_b32 s69, s33, 9")
        e("s_mov_b64 exec, 0xffffffff")
        dma(7, 56, "s68", f"s_add_u32 m0, s69, {L_WPHI}", "WPHI")
        e("s_mov_b64 exec, -1")
        e("s_min_u32 s68, s29, 3\ns_mul_i32 s69, s29, 5\ns_add_u32 s69, s69, s68")
        e("v_and_b32 v10, 31, v0\nv_lshlrev_b32 v10, 1, v10")
        e("s_add_u32 s68, s69, s33\ns_lshl_b32 s68, s68, 6")
        e("buffer_load_ushort v20, v10, s[60:63], s68 offen"); ops.append("B1")
        e("s_and_b32 s68, s33, 1\ns_add_u32 s68, s68, s69\ns_add_u32 s68, s68, 4\ns_lshl_b32 s68, s68, 6")
        e("buffer_load_ushort v21, v10, s[60:63], s68 offen"); ops.append("B1")
        issue_stage(2)
        srd(e, 44, 16, 1376 * 1024)
        srd(e, 48, 10, 512 * 1024)
        self.x_read_addr(22, "s33")
        e("s_and_b32 s68, s33, 1")
        self.p_read_addr(28, "s68", phase=1)
        e("v_add_u32 v27, 0x10000, v28")
        e("s_lshr_b32 s68, s33, 1\ns_lshl_b32 s68, s68, 13\ns_add_u32 s68, s68, %d" % G[3])
        e("v_add_u32 v26, s68, v28")
        for r in range(30, 36):
            e(f"v_mov_b32 v{r}, 0")
        e("s_mov_b32 s71, 0x3f803f80")
        self.stamp("H", "pre")

        def colsum_reads(base, off, dst):
            for s in range(4):
                for rho in range(2):
                    e(f"ds_read_b64_tr_b16 {vr(dst + 4*s + 2*rho, 2)}, v{base} offset:{off + (16*s + 4*rho)*128}")

        def colsum_dots(src, n=16):
            for r in range(n):
                e(f"v_dot2_f32_bf16 v{34 + (r & 1)}, v{src + r}, s71, v{34 + (r & 1)}")

        def issue_w(sig, gran):
            nt = 4
            if sig < 8:
                e(f"s_add_u32 s68, s30, {sig}\ns_and_b32 s68, s68, 7")
                e("s_min_u32 s69, s68, 3\ns_mul_i32 s68, s68, 5\ns_add_u32 s68, s68, s69\ns_lshl_b32 s74, s68, 15")
                rows = [("s74", u * 32768) for u in range(4)]; s = 44
            elif sig < 11:
                ft = LATE_FT[4 * (sig - 8):4 * (sig - 8) + 4]; nt = len(ft)
                rows = [(None, f * 32768) for f in ft]; s = 44
            else:
                e(f"s_lshr_b32 s68, s30, 1\ns_add_u32 s68, s68, {sig-11}\ns_and_b32 s68, s68, 3\ns_lshl_b32 s74, s68, 17")
                rows = [("s74", u * 32768) for u in range(4)]; s = 48
            for u in range(nt):
                b, c = rows[u]
                if b:
                    e(f"s_add_u32 s68, s73, {b}\ns_add_u32 s68, s68, {c}")
                else:
                    e(f"s_add_u32 s68, s73, {c}")
                dma(6, s, "s68", f"s_add_u32 m0, s35, {gran + u*4096}", f"W{sig}")

        def issue_a(sig, gran):
            nt = 4
            if sig < 8:
                e(f"s_add_u32 s68, s30, {sig}\ns_and_b32 s68, s68, 7\ns_lshl_b32 s68, s68, 13\ns_add_u32 s74, s72, s68")
            elif sig < 11:
                nt = len(LATE_FT[4 * (sig - 8):4 * (sig - 8) + 4])
                e(f"s_add_u32 s74, s72, {(32 + 4*(sig-8))*2048}")
            else:
                e(f"s_lshr_b32 s68, s30, 1\ns_add_u32 s68, s68, {sig-11}\ns_and_b32 s68, s68, 3\ns_lshl_b32 s68, s68, 13")
                e(f"s_add_u32 s74, s72, s68\ns_add_u32 s74, s74, {44*2048}")
            for u in range(nt):
                if u % 2 == 0:
                    if u:
                        e("s_add_u32 s74, s74, 4096")
                    m0 = f"s_add_u32 m0, s70, {gran + u*2048}"
                    dma(7, 52, "s74", m0, f"A{sig}", "sc1")
                else:
                    dma(7, 52, "s74", "", f"A{sig}", "offset:2048 sc1")

        def poll_issue(tag):
            e("buffer_load_dword v9, v8, s[52:55], s75 offen sc1"); ops.append(tag)

        def poll_check(tag, mask):
            lab = e.label("poll"); done = e.label("pdone")
            wait_for(tag)
            e("s_mov_b32 s69, 0")
            e(f"{lab}:")
            e("v_cmp_eq_u32 vcc, s34, v9")
            e(f"s_and_b32 s68, vcc_lo, vcc_hi\ns_and_b32 s68, s68, {mask}\ns_cmp_eq_u32 s68, {mask}")
            e(f"s_cbranch_scc1 {done}")
            e(f"s_add_u32 s69, s69, 1\ns_cmp_gt_u32 s69, {SPIN_MAX}\ns_cbranch_scc1 {done}")
            e("s_sleep 1")
            e("buffer_load_dword v9, v8, s[52:55], s75 offen sc1\ns_waitcnt vmcnt(0)")
            e(f"s_branch {lab}")
            e(f"{done}:")

        for t in range(8):
            wait_for(f"S{t}")
            e("s_barrier")
            self.stamp("H", f"B{t}")
            if 1 <= t <= 5:
                issue_stage(t + 2)
            if t == 5:
                issue_p2(0); issue_p2(1)
            if t == 6:
                issue_p2(2); issue_p2(3)
            if t == 7:
                e("s_lshl_b32 s73, s33, 13\ns_lshl_b32 s68, s32, 7\ns_add_u32 s73, s73, s68")
                e("s_lshl_b32 s68, s31, 1\ns_lshr_b32 s69, s33, 1\ns_add_u32 s68, s68, s69\ns_mul_i32 s72, s68, %d" % (60 * 2048))
                e("s_and_b32 s68, s33, 1\ns_lshl_b32 s68, s68, 10\ns_add_u32 s72, s72, s68\ns_add_u32 s72, s72, %d" % WS_A)
                e("s_lshl_b32 s70, s69, 13\ns_add_u32 s70, s70, s68")
                e(f"s_lshl_b32 s75, s31, 8\ns_add_u32 s75, s75, {WS_FLAG}")
                issue_w(0, G[0]); issue_w(1, G[3])
            for s in range(4):
                e(f"ds_read_b128 {vr(40 + 4*s, 4)}, v{22+s} offset:{G[t % 3]}")
            colsum_reads(26, 16384 * (t % 3), 56)
            e("s_waitcnt lgkmcnt(8)")
            for r in range(16):
                e(f"v_dot2_f32_bf16 v{30 + (r & 1)}, v{40+r}, s71, v{30 + (r & 1)}")
                e(f"v_dot2_f32_bf16 v{32 + (r & 1)}, v{40+r}, v{40+r}, v{32 + (r & 1)}")
            e("s_waitcnt lgkmcnt(0)")
            if t == 0:
                e("s_add_u32 s34, s34, 1")
            colsum_dots(56)
        e("s_nop 2")
        e("v_add_f32 v30, v30, v31\nv_add_f32 v32, v32, v33\nv_add_f32 v34, v34, v35")
        e("v_mov_b32 v31, v30\nv_mov_b32 v33, v32\nv_mov_b32 v35, v34\ns_nop 1")
        e("v_permlane32_swap_b32 v30, v31\nv_permlane32_swap_b32 v32, v33\nv_permlane32_swap_b32 v34, v35")
        e("s_nop 1")
        e("v_add_f32 v30, v30, v31\nv_add_f32 v32, v32, v33\nv_add_f32 v34, v34, v35")
        e("s_mov_b32 s68, 0x3b000000")
        e("v_mul_f32 v30, s68, v30\nv_mul_f32 v32, s68, v32")
        e("v_fma_f32 v32, -v30, v30, v32\nv_max_f32 v32, 0, v32\nv_add_f32 v32, 0x3727c5ac, v32")
        e("v_sqrt_f32 v32, v32\ns_nop 0\nv_rcp_f32 v33, v32")
        e("v_sub_f32 v30, 0, v30")
        e("v_cvt_pk_bf16_f32 v36, v30, v30\nv_and_b32 v37, 0xffff0000, v36\nv_sub_f32 v37, v30, v37\nv_cvt_pk_bf16_f32 v37, v37, v37")
        e("v_cvt_pk_bf16_f32 v38, v32, v32\nv_and_b32 v38, 0xffff0000, v38\nv_sub_f32 v38, v32, v38\nv_cvt_pk_bf16_f32 v38, v32, v38")
        e("s_mov_b32 s68, 0\ns_mov_b32 s69, -1")
        e("v_cndmask_b32 v36, v36, v38, s[68:69]\nv_cndmask_b32 v37, v37, 0, s[68:69]")
        e("v_lshlrev_b32 v39, 3, v0")
        e("s_lshl_b32 s74, s33, 9\nv_add_u32 v39, s74, v39")
        e("v_add_u32 v19, 0x20000, v39")
        e(f"ds_write_b64 v19, v[36:37] offset:{L_BEXT - 131072}")
        e("s_lshl_b32 s74, s33, 8\nv_add_u32 v18, s74, v8\nv_add_u32 v18, 0x20000, v18")
        e(f"ds_write_b32 v18, v33 offset:{L_RSTD - 131072}")

        def write_aext(entry_off, breg, with_b):
            e("v_cvt_pk_bf16_f32 v36, v34, v34\nv_and_b32 v36, 0xffff0000, v36\nv_sub_f32 v36, v34, v36\nv_cvt_pk_bf16_f32 v36, v34, v36")
            e(f"v_lshl_or_b32 v38, v{breg}, 16, v{breg}")
            if with_b is not True:
                e(f"v_mul_lo_u32 v38, v38, {with_b}")
            e("v_cndmask_b32 v37, v36, 0, s[68:69]\nv_cndmask_b32 v36, v36, v38, s[68:69]")
            e(f"ds_write_b64 v19, v[36:37] offset:{L_AEXT - 131072 + entry_off}")

        wait_for("B1")
        write_aext(0, 20, True)
        e("v_mov_b32 v34, 0\nv_mov_b32 v35, 0")
        e("s_waitcnt lgkmcnt(0)")
        e("s_barrier")
        self.stamp("H", "B8")
        wait_for("P2_1")
        e("s_barrier")
        self.stamp("H", "B9")

        def p2_colsum(gams):
            for gam in gams:
                for cc in range(2):
                    a = P2G[gam] + cc * 8192
                    base, off = (28, a) if a < 65536 else (27, a - 65536)
                    colsum_reads(base, off, 40 + 16 * cc)
                    e("s_waitcnt lgkmcnt(0)")
                    colsum_dots(40 + 16 * cc)

        lab = e.label("cs")
        e(f"s_cmp_ge_u32 s33, 2\ns_cbranch_scc1 {lab}")
        p2_colsum([0, 1])
        e(f"{lab}:")
        wait_for("P2_3")
        e("s_barrier")
        self.stamp("H", "B10")
        issue_w(2, G[1]); issue_w(3, G[4])
        e("v_lshrrev_b32 v10, 3, v0\nv_lshlrev_b32 v10, 10, v10\nv_and_b32 v11, 7, v0\nv_lshl_add_u32 v10, v11, 4, v10")
        e("s_lshl_b32 s68, s31, 16\ns_lshl_b32 s69, s33, 14\ns_add_u32 s68, s68, s69\ns_lshl_b32 s69, s32, 7\ns_add_u32 s74, s68, s69")
        e("s_lshl_b32 s69, s35, 1")
        dma(10, 36, "s74", f"s_add_u32 m0, s69, {L_XRES}", "XRES")
        e("s_add_u32 s74, s74, 8192")
        dma(10, 36, "s74", f"s_add_u32 m0, s69, {L_XRES + 1024}", "XRES")
        lab = e.label("cs")
        e(f"s_cmp_lt_u32 s33, 2\ns_cbranch_scc1 {lab}")
        p2_colsum([2, 3])
        e(f"{lab}:")
        e("s_nop 2\nv_add_f32 v34, v34, v35\nv_mov_b32 v35, v34\ns_nop 1\nv_permlane32_swap_b32 v34, v35\ns_nop 1\nv_add_f32 v34, v34, v35")
        e("s_mov_b32 s68, 0\ns_mov_b32 s69, -1")
        e("s_cmp_lt_u32 s33, 2\ns_cselect_b32 s74, 1, 0")
        write_aext(2048, 21, "s74")
        e("s_waitcnt lgkmcnt(0)")
        e("s_barrier")
        self.stamp("H", "B11")
        if o.get("stop") == "p1":
            e("s_waitcnt vmcnt(0)")
            self.dump_stamps("H")
            e("s_endpgm")
            return
        wg = {0: G[0], 1: G[3], 2: G[1], 3: G[4]}
        ag = {0: G[6], 1: G[7], 2: G[2], 3: G[5]}
        for sig in range(4, 15):
            wg[sig] = wg[sig - 4]; ag[sig] = ag[sig - 4]
        self.wg, self.ag = wg, ag
        poll_issue("PL1")
        poll_check("PL1", 0xFF)
        self.stamp("H", "hf1")
        for sig in range(4):
            issue_a(sig, ag[sig])
        for sig in range(15):
            wait_for(f"A{sig}")
            e("s_barrier")
            if sig in (0, 4, 8, 11, 14):
                self.stamp("H", f"S{sig}")
            nx = sig + 3
            if sig >= 1 and nx < 15:
                if nx == 8:
                    poll_check("PL2", 0xFF00)
                if nx == 11:
                    poll_check("PL3", 0xFF0000)
                    self.stamp("H", "of")
                if nx + 1 == 8:
                    poll_issue("PL2")
                if nx + 1 == 11:
                    poll_issue("PL3")
                issue_w(nx, wg[nx]); issue_a(nx, ag[nx])
        self.dump_stamps("H")
        e("s_endpgm")

    def x_read_addr(self, dst, grp):
        e = self.e
        e("v_and_b32 v10, 31, v0\nv_lshrrev_b32 v11, 5, v0")
        e("v_bfe_u32 v12, v0, 1, 3\nv_xor_b32 v11, v11, v12")
        e("v_lshlrev_b32 v10, 7, v10\nv_lshl_add_u32 v10, v11, 4, v10")
        e(f"s_lshl_b32 s69, {grp}, 12\nv_add_u32 v{dst}, s69, v10")
        for s in range(1, 4):
            e(f"v_xor_b32 v{dst+s}, {32*s}, v{dst}")

    def p_read_addr(self, dst, tau, phase):
        e = self.e
        e("v_bfe_u32 v10, v0, 2, 2")
        e("v_lshrrev_b32 v11, 5, v0")
        e(f"v_lshl_add_u32 v11, v11, {3 if phase == 1 else 2}, v10")
        e("v_lshlrev_b32 v11, 7, v11")
        e("v_bfe_u32 v12, v0, 4, 1\nv_lshl_add_u32 v11, v12, 5, v11")
        e("v_and_b32 v12, 3, v0\nv_lshl_add_u32 v11, v12, 3, v11")
        e(f"v_lshrrev_b32 v10, 1, v10\nv_xor_b32 v10, {tau}, v10")
        e(f"v_lshl_add_u32 v{dst}, v10, 6, v11")

    def softmax(self, L, c, out):
        e = self.e
        e(f"v_max3_f32 v24, v{L}, v{L+1}, v{L+2}\nv_max3_f32 v25, v{L+3}, v{L+4}, v{L+5}")
        e(f"v_max3_f32 v26, v{L+6}, v{L+7}, v{L+8}\nv_max3_f32 v27, v{L+9}, v{L+10}, v{L+11}")
        e(f"v_max3_f32 v24, v24, v{L+12}, v{L+13}\nv_max3_f32 v25, v25, v{L+14}, v{L+15}")
        e("v_max3_f32 v24, v24, v26, v27\nv_max_f32 v24, v24, v25")
        e(f"v_mul_f32 v24, v24, v{c}")
        for r in range(16):
            e(f"v_fma_f32 v{L+r}, v{L+r}, v{c}, -v24")
        for r in range(16):
            e(f"v_exp_f32 v{L+r}, v{L+r}")
        e("s_nop 0")
        e(f"v_pk_add_f32 v[24:25], {vr(L,2)}, {vr(L+2,2)}\nv_pk_add_f32 v[26:27], {vr(L+4,2)}, {vr(L+6,2)}")
        e(f"v_pk_add_f32 v[24:25], v[24:25], {vr(L+8,2)}\nv_pk_add_f32 v[26:27], v[26:27], {vr(L+10,2)}")
        e(f"v_pk_add_f32 v[24:25], v[24:25], {vr(L+12,2)}\nv_pk_add_f32 v[26:27], v[26:27], {vr(L+14,2)}")
        e("v_pk_add_f32 v[24:25], v[24:25], v[26:27]\nv_add_f32 v24, v24, v25")
        e("v_rcp_f32 v24, v24\ns_nop 0\nv_mov_b32 v25, v24")
        for r in range(0, 16, 2):
            e(f"v_pk_mul_f32 {vr(L+r,2)}, {vr(L+r,2)}, v[24:25]")
        for j in range(8):
            e(f"v_cvt_pk_bf16_f32 v{out+j}, v{L+2*j}, v{L+2*j+1}")

    def load_phi(self, dsts):
        e = self.e
        for a in range(4):
            for rho in range(2):
                e(f"ds_read_b64_tr_b16 {vr(dsts[a] + 2*rho, 2)}, v23 offset:{L_WPHI - 131072 + a*512 + rho*256}")

    def phi_sign(self, dsts):
        for a in range(4):
            for j in range(4):
                self.e(f"v_xor_b32 v{dsts[a]+j}, v22, v{dsts[a]+j}")

    def flag_store(self, soff_code):
        e = self.e
        e(soff_code)
        e("s_mov_b64 exec, 1")
        e("buffer_store_dword v21, v20, s[52:55], s68 offen sc1")
        e("s_mov_b64 exec, -1")

    def ffn_tile(self, T, soff):
        e = self.e
        for r in range(16):
            e(f"v_max_f32 v{T+r}, 0, v{T+r}")
        for r in range(0, 16, 2):
            e(f"v_pk_mul_f32 {vr(T+r,2)}, {vr(T+r,2)}, v[16:17]")
        for r in range(0, 16, 2):
            e(f"v_pk_mul_f32 {vr(T+r,2)}, {vr(T+r,2)}, {vr(T+r,2)}")
        for j in range(8):
            e(f"v_cvt_pk_bf16_f32 v{T+j}, v{T+2*j}, v{T+2*j+1}")
        e(f"buffer_store_dwordx4 {vr(T,4)}, v1, s[52:55], {soff} offen sc1")
        e(f"buffer_store_dwordx4 {vr(T+4,4)}, v1, s[52:55], {soff} offen offset:1024 sc1")

    def gen_C(self):
        e = self.e
        o = self.o
        T = [64, 80, 96, 112]
        e("v_lshlrev_b32 v1, 4, v0")
        self.x_read_addr(2, "s33")
        self.p_read_addr(6, "0", 1)
        e("v_xor_b32 v7, 64, v6\nv_add_u32 v8, 0x10000, v6\nv_add_u32 v9, 0x10000, v7")
        e("v_mov_b32 v20, 0")
        e("v_bfe_u32 v22, v0, 2, 1\ns_mov_b32 s68, 0x80008000\nv_mul_lo_u32 v22, v22, s68")
        e("v_bfe_u32 v10, v0, 2, 2\nv_lshrrev_b32 v11, 5, v0\nv_lshl_add_u32 v10, v11, 2, v10\nv_lshlrev_b32 v10, 5, v10")
        e("v_bfe_u32 v11, v0, 4, 1\nv_lshl_add_u32 v10, v11, 4, v10\nv_bfe_u32 v11, v0, 1, 1\nv_lshl_add_u32 v10, v11, 3, v10")
        e("v_add_u32 v23, 0x20000, v10")
        e("s_waitcnt lgkmcnt(0)")
        if o.get("stamps"):
            e("s_mov_b32 s3, s74")
        e(f"s_load_dword s34, s[24:25], {WS_EPOCH}")
        srd(e, 52, 24, WS_SIZE)
        srd(e, 56, 20, 2048 * 1024)
        srd(e, 60, 22, 256)
        e("s_lshl_b32 s68, s27, 2\ns_add_u32 s68, s68, s33")
        e(f"s_mul_i32 s70, s68, {60*2048}\ns_add_u32 s70, s70, {WS_A}")
        e(f"s_lshl_b32 s71, s68, 7\ns_add_u32 s71, s71, {WS_FLAG}")
        self.stamp("C", "pre")

        def reads1(k):
            t, s = divmod(k, 4)
            fb = 32 + 16 * (k & 1)
            R = [f"ds_read_b128 {ar(4*k,4)}, v{2+s} offset:{G[t % 3]}"]
            for q in range(4):
                a = G[3 + t % 3] + (q >> 1) * 8192
                base = (6 if a < 65536 else 8) + (q & 1)
                off = a % 65536
                for rho in range(2):
                    R.append(f"ds_read_b64_tr_b16 {vr(fb + 4*q + 2*rho, 2)}, v{base} offset:{off + (16*s + 4*rho)*128}")
            return R

        e("s_barrier")
        self.stamp("C", "B0")
        for r in reads1(0):
            e(r)
        for k in range(32):
            fb = 32 + 16 * (k & 1)
            R = reads1(k + 1) if k < 31 else []
            boundary = (k % 4 == 3)
            if boundary:
                e("s_waitcnt lgkmcnt(0)")
                e("s_barrier")
                if k in (3, 15, 31):
                    self.stamp("C", f"B{(k+1)//4}")
                if k == 3:
                    e("s_add_u32 s34, s34, 1\nv_mov_b32 v21, s34")
                if k == 15:
                    lab = e.label("ctr")
                    e(f"s_cmp_lg_u32 s26, 0\ns_cbranch_scc1 {lab}")
                    e("s_mov_b64 exec, 1\nv_mov_b32 v30, 1\nbuffer_atomic_add v30, v20, s[60:63], 0 offen sc0\ns_mov_b64 exec, -1")
                    e(f"{lab}:")
                if k == 31:
                    e("v_lshlrev_b32 v19, 3, v0\nv_add_u32 v19, 0x20000, v19")
                    e("s_lshl_b32 s68, s33, 9\nv_add_u32 v10, s68, v19")
                    R = [f"ds_read_b64 v[28:29], v10 offset:{L_BEXT - 131072}"]
                    e("v_lshlrev_b32 v11, 2, v0\ns_lshl_b32 s68, s33, 8\ns_add_u32 s68, s68, 0x20000\nv_add_u32 v11, s68, v11")
                    R.append(f"ds_read_b32 v16, v11 offset:{L_RSTD - 131072}")
                    for q in range(4):
                        R.append(f"ds_read_b64 {vr([24, 26, 12, 14][q], 2)}, v19 offset:{L_AEXT - 131072 + q*512}")
            waits = [6, 7, 8, 9]
            for q in range(4):
                if not boundary:
                    e(f"s_waitcnt lgkmcnt({waits[q]})")
                src = "0" if k == 0 else vr(T[q], 16)
                e(f"v_mfma_f32_32x32x16_bf16 {vr(T[q],16)}, {vr(fb+4*q,4)}, {ar(4*k,4)}, {src}")
                for r in R[3 * q:3 * q + 3]:
                    e(r)
        e("s_waitcnt lgkmcnt(0)")
        for q in (2, 3, 0, 1):
            e(f"v_mfma_f32_32x32x8_bf16 {vr(T[q],16)}, {vr([24, 26, 12, 14][q],2)}, v[28:29], {vr(T[q],16)}")
        e("v_mov_b32 v17, v16")
        e(f"v_mul_f32 v18, {hex(LOG2E)}, v16")
        lab = e.label("bump")
        e(f"s_cmp_lg_u32 s26, 0\ns_cbranch_scc1 {lab}")
        e("s_waitcnt vmcnt(0)\nv_readfirstlane_b32 s68, v30\ns_nop 3")
        e(f"s_cmp_lg_u32 s68, 255\ns_cbranch_scc1 {lab}")
        self.flag_store(f"s_mov_b32 s68, {WS_EPOCH}")
        e(f"{lab}:")
        e("s_cmp_lg_u32 s28, 0\ns_cbranch_scc1 L_C_ffn1")

        PH = [32, 36, 40, 44]
        self.load_phi(PH)
        e("v_and_b32 v12, 31, v0\ns_lshl_b32 s68, s33, 5\nv_add_u32 v12, s68, v12\nv_lshrrev_b32 v13, 5, v0")
        e("v_mul_u32_u24 v10, 160, v12\nv_lshl_add_u32 v10, v13, 4, v10\nv_add_u32 v10, 0x20000, v10")
        e("v_lshlrev_b32 v11, 6, v12\nv_lshl_add_u32 v11, v13, 5, v11\nv_add_u32 v12, 0x10000, v11")
        e("v_mov_b32 v48, 0x3f803f80\nv_mov_b32 v49, v48\nv_mov_b32 v50, v48\nv_mov_b32 v51, v48")
        e(f"ds_write_b128 v10, v[48:51] offset:{L_VT - 131072 + 128}")
        e("s_nop 3")
        for tau in range(2):
            V = T[2 + tau]
            for r in range(0, 16, 2):
                e(f"v_pk_mul_f32 {vr(V+r,2)}, {vr(V+r,2)}, v[16:17]")
            for j in range(8):
                e(f"v_cvt_pk_bf16_f32 v{V+j}, v{V+2*j}, v{V+2*j+1}")
            e(f"ds_write_b128 v10, {vr(V,4)} offset:{L_VT - 131072 + 64*tau}")
            e(f"ds_write_b128 v10, {vr(V+4,4)} offset:{L_VT - 131072 + 64*tau + 32}")
        for tau in range(2):
            for j in range(8):
                e(f"v_cvt_pk_bf16_f32 v{T[tau]+j}, v{T[tau]+2*j}, v{T[tau]+2*j+1}")
        e("s_waitcnt lgkmcnt(0)")
        self.phi_sign(PH)
        e("s_nop 1")
        PTA = [(11, G[1]), (11, G[1] + 8192), (12, G[4] - 65536), (12, G[4] - 65536 + 8192)]
        for tau in range(2):
            for hh in range(2):
                e(f"v_mfma_f32_32x32x16_bf16 {vr(T[2+hh],16)}, {vr(PH[2*tau+hh],4)}, {vr(T[tau]+4*hh,4)}, 0")
            e("s_nop 10")
            for hh in range(2):
                self.softmax(T[2 + hh], 18, 48 + 8 * hh)
                b, off = PTA[2 * tau + hh]
                e(f"ds_write_b128 v{b}, {vr(48+8*hh,4)} offset:{off}")
                e(f"ds_write_b128 v{b}, {vr(52+8*hh,4)} offset:{off+16}")
        e("s_waitcnt lgkmcnt(0)")
        e("s_barrier")
        self.stamp("C", "B9")
        e("v_bfe_u32 v12, v0, 2, 2\nv_lshrrev_b32 v13, 5, v0\nv_lshl_add_u32 v12, v13, 3, v12")
        e("v_and_b32 v13, 1, v0\nv_bfe_u32 v14, v0, 1, 1\nv_bfe_u32 v15, v0, 4, 1")
        e("v_lshlrev_b32 v10, 6, v12\nv_lshl_add_u32 v10, v13, 5, v10\nv_lshl_add_u32 v10, v15, 4, v10\nv_lshl_add_u32 v10, v14, 3, v10")
        e(f"s_and_b32 s68, s33, 1\ns_lshl_b32 s68, s68, 13\ns_lshr_b32 s69, s33, 1\ns_mul_i32 s69, s69, {G[4]-G[1]}\ns_add_u32 s68, s68, s69\ns_add_u32 s68, s68, {G[1]}")
        e("v_add_u32 v10, s68, v10")
        e("v_mul_u32_u24 v11, 160, v12\nv_lshl_add_u32 v11, v13, 4, v11\nv_lshl_add_u32 v11, v14, 3, v11")
        e("s_lshl_b32 s68, s33, 5\nv_mov_b32 v12, s68\nv_cmp_eq_u32 vcc, 1, v15\nv_mov_b32 v13, 128\nv_cndmask_b32 v12, v12, v13, vcc")
        e(f"v_add_u32 v11, v11, v12\nv_add_u32 v11, {L_VT}, v11")
        def kvreads(kap):
            fb = 32 + 8 * (kap & 3)
            for rho in range(2):
                e(f"ds_read_b64_tr_b16 {vr(fb + 2*rho, 2)}, v10 offset:{(16*kap + 4*rho)*64}")
            for rho in range(2):
                e(f"ds_read_b64_tr_b16 {vr(fb + 4 + 2*rho, 2)}, v11 offset:{(16*kap + 4*rho)*160}")
        kvreads(0); kvreads(1)
        for kap in range(8):
            fb = 32 + 8 * (kap & 3)
            if kap + 2 < 8:
                kvreads(kap + 2)
            e(f"s_waitcnt lgkmcnt({4 * min(2, 7 - kap)})")
            src = "0" if kap == 0 else vr(T[2], 16)
            e(f"v_mfma_f32_32x32x16_bf16 {vr(T[2],16)}, {vr(fb,4)}, {vr(fb+4,4)}, {src}")
        e("v_and_b32 v12, 31, v0\nv_lshrrev_b32 v13, 5, v0\nv_mul_u32_u24 v10, 272, v13\nv_lshl_add_u32 v10, v12, 4, v10")
        e("s_lshl_b32 s68, s29, 2\ns_add_u32 s68, s68, s33\ns_lshl_b32 s69, s68, 4\ns_add_u32 s69, s69, s27")
        e(f"s_mul_i32 s69, s69, 1152\ns_add_u32 s69, s69, {WS_KVP}")
        e(f"s_lshl_b32 s72, s68, 7\ns_add_u32 s72, s72, {WS_KVF}")
        e("s_nop 6")
        for j in range(8):
            e(f"v_cvt_pk_bf16_f32 v{T[2]+j}, v{T[2]+2*j}, v{T[2]+2*j+1}")
        e("s_mov_b32 exec_lo, 0x1ffff\ns_mov_b32 exec_hi, 0x1ffff")
        e(f"buffer_store_dwordx4 {vr(T[2],4)}, v10, s[52:55], s69 offen sc1")
        e(f"buffer_store_dwordx4 {vr(T[2]+4,4)}, v10, s[52:55], s69 offen offset:544 sc1")
        e("s_mov_b64 exec, -1")
        e("s_lshl_b32 s73, s27, 2\ns_add_u32 s73, s73, s72")
        e("s_branch L_C_pass2")

        e("L_C_ffn1:")
        e("s_lshl_b32 s68, s29, 13\ns_add_u32 s69, s70, s68")
        e("s_nop 4")
        for q in (2, 3, 0, 1):
            e(f"s_add_u32 s68, s69, {q*2048}")
            self.ffn_tile(T[q], "s68")
        e("s_lshl_b32 s73, s29, 2\ns_add_u32 s73, s73, s71")
        e("s_barrier")
        self.stamp_n["C"] -= 1 if o.get("stamps") else 0
        self.stamp("C", "B9")

        e("L_C_pass2:")
        P2G = [G[6], G[7], G[2], G[5]]

        def reads2(k):
            t, s = divmod(k, 4)
            a = P2G[t >> 1] + (t & 1) * 8192
            fb = 32 + 8 * (k & 3)
            R = []
            for q in range(2):
                base = (6 if a < 65536 else 8) + q
                for rho in range(2):
                    R.append(f"ds_read_b64_tr_b16 {vr(fb + 4*q + 2*rho, 2)}, v{base} offset:{a % 65536 + (16*s + 4*rho)*128}")
            return R

        for k in (0, 1):
            for r in reads2(k):
                e(r)
        for k in range(32):
            fb = 32 + 8 * (k & 3)
            R = reads2(k + 2) if k + 2 < 32 else []
            if k == o.get("flag1_k", 12):
                e("s_waitcnt vmcnt(0)")
                self.flag_store("s_mov_b32 s68, s73")
            sync = False
            if k == 14:
                e("s_waitcnt lgkmcnt(0)\ns_barrier")
                self.stamp("C", "B10")
                sync = True
            if k == 30:
                e("s_waitcnt lgkmcnt(0)\ns_barrier")
                self.stamp("C", "B11")
                R = [f"ds_read_b64 {vr([24, 26, 12, 14][q], 2)}, v19 offset:{L_AEXT - 131072 + 2048 + q*512}" for q in range(4)]
                sync = True
            for q in range(2):
                if not sync and k not in (15, 31):
                    e(f"s_waitcnt lgkmcnt({6 if q == 0 else 6})")
                src = "0" if k == 0 else vr(T[q], 16)
                e(f"v_mfma_f32_32x32x16_bf16 {vr(T[q],16)}, {vr(fb+4*q,4)}, {ar(4*k,4)}, {src}")
                for r in R[2 * q:2 * q + 2]:
                    e(r)
        e("s_waitcnt lgkmcnt(0)")
        for q in range(4):
            e(f"v_mfma_f32_32x32x8_bf16 {vr(T[q & 1],16)}, {vr([24, 26, 12, 14][q],2)}, v[28:29], {vr(T[q & 1],16)}")
        e("s_lshl_b32 s68, s32, 7\ns_and_b32 s69, s33, 1\ns_lshl_b32 s69, s69, 6\ns_add_u32 s68, s68, s69")
        e("v_lshrrev_b32 v10, 5, v0\nv_lshlrev_b32 v10, 3, v10\nv_add_u32 v10, s68, v10")
        for q in range(4):
            e(f"global_load_dwordx2 {vr(56+2*q,2)}, v10, s[18:19] offset:{16*q}")
        e("s_cmp_lg_u32 s28, 0\ns_cbranch_scc1 L_C_ffn2")

        PH = [T[0] + 8, T[0] + 12, T[1] + 8, T[1] + 12]
        e("s_nop 8")
        for tau in range(2):
            for j in range(8):
                e(f"v_cvt_pk_bf16_f32 v{T[tau]+j}, v{T[tau]+2*j}, v{T[tau]+2*j+1}")
        self.load_phi(PH)
        e("s_waitcnt lgkmcnt(0)")
        self.phi_sign(PH)
        e("s_nop 1")
        for a in range(4):
            Lr = 32 if a % 2 == 0 else 96 + 8 * a
            Lr = 32
            e(f"v_mfma_f32_32x32x16_bf16 {vr(32,16)}, {vr(PH[a],4)}, {vr(T[a>>1]+4*(a&1),4)}, 0")
            e("s_nop 11")
            self.softmax(32, 18, 96 + 8 * a)
        e("s_branch L_C_p2")

        e("L_C_ffn2:")
        e("s_min_u32 s68, s29, 3\ns_add_u32 s68, s68, s29\ns_lshl_b32 s68, s68, 11\ns_add_u32 s69, s70, s68")
        e(f"s_add_u32 s69, s69, {32*2048}")
        e("s_nop 6")
        self.ffn_tile(T[0], "s69")
        lab = e.label("one")
        e(f"s_cmp_ge_u32 s29, 3\ns_cbranch_scc1 {lab}")
        e("s_add_u32 s69, s69, 2048")
        self.ffn_tile(T[1], "s69")
        e(f"{lab}:")
        e("s_waitcnt vmcnt(0)")
        self.flag_store("s_lshl_b32 s68, s29, 2\ns_add_u32 s68, s68, s71\ns_add_u32 s68, s68, 32")

        e("L_C_p2:")
        self.stamp("C", "e2")
        if o.get("stop") == "p1":
            e("s_waitcnt vmcnt(0)")
            self.dump_stamps("C")
            e("s_endpgm")
            return
        wg, ag = self.wg, self.ag
        e("s_lshr_b32 s68, s33, 1\ns_lshl_b32 s68, s68, 13\nv_add_u32 v2, s68, v1\nv_add_u32 v3, 0x10000, v2")
        e("s_and_b32 s68, s33, 1")
        self.p_read_addr(4, "s68", 2)
        e("v_add_u32 v5, 0x10000, v4")
        e("v_and_b32 v10, 31, v0\ns_lshr_b32 s68, s33, 1\ns_lshl_b32 s68, s68, 5\nv_add_u32 v10, s68, v10\nv_lshrrev_b32 v11, 5, v0")
        e("s_and_b32 s69, s33, 1\ns_lshl_b32 s69, s69, 6")
        e(f"v_lshlrev_b32 v6, 7, v10\nv_lshl_add_u32 v6, v11, 3, v6\nv_add_u32 v6, s69, v6\nv_add_u32 v6, {L_XRES}, v6")
        e("v_lshlrev_b32 v7, 10, v10\nv_lshl_add_u32 v7, v11, 4, v7\nv_add_u32 v7, s69, v7")
        e("s_lshl_b32 s68, s31, 16\ns_lshl_b32 s69, s32, 7\ns_add_u32 s66, s68, s69")
        ACC = T[0]
        steps = []
        for sig in range(15):
            nt = 3 if sig == 10 else 4
            steps += [(sig, u, sp) for u in range(nt) for sp in range(2)]

        def reads3(n):
            sig, u, sp = steps[n]
            fb = 32 + 8 * (n % 3)
            a, w = ag[sig], wg[sig]
            R = [f"ds_read_b128 {vr(fb,4)}, v{2 if a < 65536 else 3} offset:{a % 65536 + u*2048 + sp*1024}"]
            for rho in range(2):
                R.append(f"ds_read_b64_tr_b16 {vr(fb+4+2*rho,2)}, v{4 if w < 65536 else 5} offset:{w % 65536 + (32*u + 16*sp + 8*rho)*128}")
            return R

        e("s_barrier")
        self.stamp("C", "S0")
        for q in range(4):
            e(f"ds_read_b64 {vr(8+2*q,2)}, v6 offset:{16*q}")
        for n in (0, 1):
            for r in reads3(n):
                e(r)
        e("s_waitcnt vmcnt(0) lgkmcnt(6)")
        for j in range(8):
            e(f"v_lshlrev_b32 v24, 16, v{8+j}\nv_and_b32 v25, 0xffff0000, v{8+j}")
            e(f"v_lshlrev_b32 v26, 16, v{56+j}\nv_and_b32 v27, 0xffff0000, v{56+j}")
            e(f"v_pk_add_f32 {vr(ACC+2*j,2)}, v[24:25], v[26:27]")
        e("s_nop 1")
        SA, SB, SC, SF = o.get("sig_kvpoll", 1), o.get("sig_kvred", 4), None, None
        N = len(steps)
        for n in range(N):
            sig, u, sp = steps[n]
            fb = 32 + 8 * (n % 3)
            nxt = n + 2
            sync = False
            if nxt < N and steps[nxt][0] != steps[nxt - 1][0]:
                e("s_waitcnt lgkmcnt(0)")
                nsig = steps[nxt][0]
                self.chain_hooks_pre(nsig, SA, SB, T)
                e("s_barrier")
                if nsig in (4, 8, 11, 14):
                    self.stamp("C", f"S{nsig}")
                self.chain_hooks_post(nsig, SA, SB, T)
                sync = True
                self.synced_until = n + 1
            if not sync and n > getattr(self, "synced_until", -1):
                e(f"s_waitcnt lgkmcnt({3 if nxt - 1 < N and n + 1 < N else 0})")
            e(f"v_mfma_f32_32x32x16_bf16 {vr(ACC,16)}, {vr(fb+4,4)}, {vr(fb,4)}, {vr(ACC,16)}")
            if nxt < N:
                for r in reads3(nxt):
                    e(r)
        e("s_nop 15")
        for j in range(8):
            e(f"v_cvt_pk_bf16_f32 v{ACC+j}, v{ACC+2*j}, v{ACC+2*j+1}")
        e("s_nop 1")
        for b in (0, 4):
            e(f"v_permlane32_swap_b32 v{ACC+b}, v{ACC+b+2}\nv_permlane32_swap_b32 v{ACC+b+1}, v{ACC+b+3}")
        e(f"buffer_store_dwordx4 {vr(ACC,4)}, v7, s[56:59], s66 offen")
        e(f"buffer_store_dwordx4 {vr(ACC+4,4)}, v7, s[56:59], s66 offen offset:32")
        self.stamp("C", "end")
        self.dump_stamps("C")
        e("s_endpgm")

    def chain_hooks_pre(self, nsig, SA, SB, T):
        e = self.e
        if nsig == SB + 1:
            lab = e.label("red")
            e(f"s_cmp_lg_u32 s28, 0\ns_cbranch_scc1 {lab}")
            D = T[1]
            e("v_and_b32 v24, 31, v0\nv_lshrrev_b32 v25, 5, v0\nv_lshlrev_b32 v25, 2, v25\nv_sub_u32 v24, v24, v25")
            e("v_mov_b32 v26, 0x3f80\nv_mov_b32 v27, 0x3f800000")
            for s in range(2):
                for dw in range(4):
                    p0 = 2 * (dw & 1) + 16 * s + 8 * (dw >> 1)
                    r = 8 + 4 * s + dw
                    e(f"v_cmp_eq_u32 vcc, {p0}, v24\ns_nop 1\nv_cndmask_b32 v{r}, 0, v26, vcc")
                    e(f"v_cmp_eq_u32 vcc, {p0+1}, v24\ns_nop 1\nv_cndmask_b32 v{r}, v{r}, v27, vcc")
            e("s_waitcnt vmcnt(0)")
            for i in range(16):
                for s in range(2):
                    src = "0" if (i == 0 and s == 0) else vr(D, 16)
                    e(f"v_mfma_f32_32x32x16_bf16 {vr(D,16)}, {vr(8+4*s,4)}, {ar(8*i+4*s,4)}, {src}")
            e(f"s_lshl_b32 s68, s33, 11\ns_add_u32 s68, s68, {L_KVX}\nv_add_u32 v24, s68, v1")
            e("s_nop 12")
            for j in range(8):
                e(f"v_cvt_pk_bf16_f32 v{D+j}, v{D+2*j}, v{D+2*j+1}")
            e(f"ds_write_b128 v24, {vr(D,4)}\nds_write_b128 v24, {vr(D+4,4)} offset:1024")
            e("s_waitcnt lgkmcnt(0)")
            e(f"{lab}:")
        if nsig == SB + 3:
            lab = e.label("oflag")
            e(f"s_cmp_lg_u32 s28, 0\ns_cbranch_scc1 {lab}")
            e("s_waitcnt vmcnt(0)")
            self.flag_store("s_lshl_b32 s68, s29, 2\ns_add_u32 s68, s68, s71\ns_add_u32 s68, s68, 64")
            e(f"{lab}:")

    def chain_hooks_post(self, nsig, SA, SB, T):
        e = self.e
        if nsig == SA:
            lab = e.label("kvl"); pl = e.label("kvp"); done = e.label("kvd")
            e(f"s_cmp_lg_u32 s28, 0\ns_cbranch_scc1 {lab}")
            e("v_and_b32 v24, 15, v0\nv_lshlrev_b32 v24, 2, v24\ns_mov_b32 s69, 0")
            e(f"{pl}:")
            e("buffer_load_dword v25, v24, s[52:55], s72 offen sc1\ns_waitcnt vmcnt(0)")
            e("v_cmp_ne_u32 vcc, s34, v25")
            e(f"s_add_u32 s69, s69, 1\ns_cmp_gt_u32 s69, {SPIN_MAX}\ns_cbranch_scc1 {done}")
            e(f"s_cbranch_vccnz {pl}")
            e(f"{done}:")
            e("v_and_b32 v24, 31, v0\nv_min_u32 v24, 16, v24\nv_lshrrev_b32 v25, 5, v0\nv_mul_u32_u24 v25, 272, v25\nv_lshl_add_u32 v24, v24, 4, v25")
            e(f"s_lshl_b32 s68, s29, 2\ns_add_u32 s68, s68, s33\ns_mul_i32 s68, s68, {16*1152}\ns_add_u32 s68, s68, {WS_KVP}")
            for i in range(16):
                if i % 2 == 0 and i:
                    e(f"s_add_u32 s68, s68, {2*1152}")
                for s in range(2):
                    e(f"buffer_load_dwordx4 {ar(8*i+4*s,4)}, v24, s[52:55], s68 offen offset:{(i % 2)*1152 + 544*s} sc1")
            e(f"{lab}:")
        if nsig == SB + 1:
            lab = e.label("ocomp")
            e(f"s_cmp_lg_u32 s28, 0\ns_cbranch_scc1 {lab}")
            D = T[1]
            e(f"v_add_u32 v24, {L_KVX}, v1")
            for a in range(4):
                for s in range(2):
                    e(f"ds_read_b128 {ar(8*a+4*s,4)}, v24 offset:{a*2048 + s*1024}")
            e("s_waitcnt lgkmcnt(0)")
            e(f"s_lshl_b32 s68, s29, 12\ns_add_u32 s68, s68, s70\ns_add_u32 s68, s68, {44*2048}")
            for a in range(4):
                e(f"v_mfma_f32_32x32x16_bf16 {vr(D,16)}, {ar(8*a,4)}, {vr(96+8*a,4)}, 0")
                e(f"v_mfma_f32_32x32x16_bf16 {vr(D,16)}, {ar(8*a+4,4)}, {vr(100+8*a,4)}, {vr(D,16)}")
                e("s_nop 12")
                e(f"v_add_f32 v24, 0x358637bd, v{D+8}\nv_rcp_f32 v24, v24\ns_nop 0\nv_mov_b32 v25, v24")
                for r in range(0, 8, 2):
                    e(f"v_pk_mul_f32 {vr(D+r,2)}, {vr(D+r,2)}, v[24:25]")
                for j in range(4):
                    e(f"v_cvt_pk_bf16_f32 v{8+4*(a&1)+j}, v{D+2*j}, v{D+2*j+1}")
                e(f"buffer_store_dwordx4 {vr(8+4*(a&1),4)}, v1, s[52:55], s68 offen offset:{(a>>1)*2048 + (a&1)*1024} sc1")
                e("s_nop 1")
            e(f"{lab}:")

    def build(self):
        o = self.o
        hdr = open("cdna_kernels/" + KN + ".s.ref").read().split("\n")
        head = [l for l in hdr if l.startswith(";") and "@launch" not in l]
        out = "\n".join(head) + "\n"
        out += f"; @launch grid=(256,1,1) block=(512,1,1) lds={LDS_BYTES}\n"
        out += '.amdgcn_target "amdgcn-amd-amdhsa--gfx950"\n.text\n'
        self.prologue()
        main = self.e
        self.e = Asm(); self.e.nlab = 1000
        self.gen_H()
        Htext = self.e.text()
        self.e = main
        self.gen_C()
        out += main.text() + Htext + "L_end:\n    s_endpgm\n"
        out += f""".section .rodata,"a"
.p2align 6
.amdhsa_kernel {KN}_kernel
  .amdhsa_next_free_vgpr 256
  .amdhsa_next_free_sgpr 102
  .amdhsa_accum_offset 128
  .amdhsa_group_segment_fixed_size 0
  .amdhsa_kernarg_size 96
  .amdhsa_user_sgpr_count 2
  .amdhsa_user_sgpr_kernarg_segment_ptr 1
  .amdhsa_system_sgpr_workgroup_id_x 1
.end_amdhsa_kernel
"""
        return out


def make(path, **opt):
    g = Gen(opt)
    s = g.build()
    open(path, "w").write(s)
    return g


if __name__ == "__main__":
    import json
    opt = json.loads(sys.argv[2]) if len(sys.argv) > 2 else {}
    g = make(sys.argv[1], **opt)
    print("stamps:", g.stamp_names)
```
